```python
import torch

def _softmax(x, axis=-1):
    return torch.softmax(x, dim=axis)
def _gelu(x):
    return torch.nn.functional.gelu(x, approximate="tanh")
def _silu(x):
    return torch.nn.functional.silu(x)
def _sigmoid(x):
    return torch.sigmoid(x)
def _layernorm(x, axis=-1, eps=1e-5):
    m = x.mean(dim=axis, keepdim=True)
    v = x.var(dim=axis, keepdim=True, unbiased=False)
    return (x - m) / torch.sqrt(v + eps)
def _scatter_add(tgt, idx, src, axis=0):
    return tgt.clone().index_add_(axis, idx, src)
def _segment_sum(src, seg, n):
    out = torch.zeros((n,) + src.shape[1:], dtype=src.dtype)
    return out.index_add_(0, seg, src)
def _pad(x, pw):
    flat = tuple(v for pair in reversed(pw) for v in pair)
    return torch.nn.functional.pad(x, flat)

kernel_name = 'parallel_sum__ssm_conv_s4d__mixer_channel_mlp__prompt'

def setup_inputs():

    _w = (lambda a: (lambda t: t.to(torch.bfloat16) if t.is_floating_point() else t)(torch.as_tensor(a)))
    def _A_setup():
        Bsz, L, D, N = 1, 2048, 512, 128
        return {
            "u": _w((lambda *s: torch.randn(*s, dtype=torch.bfloat16) * 0.05)(Bsz, L, D)),
            "log_A_real": _w((lambda *s: torch.randn(*s, dtype=torch.bfloat16) * 3.2)(D, N) * 0.5),
            "A_imag": _w((lambda *s: torch.randn(*s, dtype=torch.bfloat16) * 0.05)(D, N) * 3.14),
            "C_real": _w((lambda *s: torch.randn(*s, dtype=torch.bfloat16) * 0.1)(D, N) / N ** 0.5),
            "C_imag": _w((lambda *s: torch.randn(*s, dtype=torch.bfloat16) * 0.2)(D, N) / N ** 0.5),
            "log_dt": _w((lambda *s: torch.randn(*s, dtype=torch.bfloat16) * 0.05)(D) * 0.5 - 4.0),
            "D_skip": _w((lambda *s: torch.randn(*s, dtype=torch.bfloat16) * 0.05)(D)),
        }
    _A_in = _A_setup()

    def _B_setup():
        B, S, D, F = 1, 2048, 512, 1376
        return {
            "x": _w((lambda *s: torch.randn(*s, dtype=torch.bfloat16) * 0.05)(B, S, D)),
            "w1": _w((lambda *s: torch.randn(*s, dtype=torch.bfloat16) * 1.6)(D, F) * (D ** -0.5)),
            "b1": _w((lambda *s: torch.randn(*s, dtype=torch.bfloat16) * 0.8)(F)),
            "w2": _w((lambda *s: torch.randn(*s, dtype=torch.bfloat16) * 0.05)(F, D) * (F ** -0.5)),
            "b2": _w((lambda *s: torch.randn(*s, dtype=torch.bfloat16) * 0.05)(D)),
        }
    _B_in = _B_setup()

    return {
        "A_u": _A_in["u"],
        "A_log_A_real": _A_in["log_A_real"],
        "A_A_imag": _A_in["A_imag"],
        "A_C_real": _A_in["C_real"],
        "A_C_imag": _A_in["C_imag"],
        "A_log_dt": _A_in["log_dt"],
        "A_D_skip": _A_in["D_skip"],
        "B_x": _B_in["x"],
        "B_w1": _B_in["w1"],
        "B_b1": _B_in["b1"],
        "B_w2": _B_in["w2"],
        "B_b2": _B_in["b2"],
    }

def reference(A_u, A_log_A_real, A_A_imag, A_C_real, A_C_imag, A_log_dt, A_D_skip, B_x, B_w1, B_b1, B_w2, B_b2):
    def _A_ref(u, log_A_real, A_imag, C_real, C_imag, log_dt, D_skip):
        L = u.shape[1]
        dt = torch.exp(log_dt)
        A = -torch.exp(log_A_real) + 1j * A_imag
        C = (C_real + 1j * C_imag) * dt[:, None]
        pos = (lambda x, dt: x.to(dt))(torch.arange(L), log_dt.dtype)
        P = torch.exp((A * dt[:, None])[:, :, None] * pos[None, None, :])
        K = 2.0 * torch.einsum("dn,dnl->dl", C, P).real
        L2 = 2 * L
        u_t = (lambda x, *d: x.permute(*d))(u, 0, 2, 1)
        Kf = (lambda x, *a, **k: torch.fft.rfft(x.float(), *a, **k))(K, L2)
        Uf = (lambda x, *a, **k: torch.fft.rfft(x.float(), *a, **k))(u_t, L2)
        y = (lambda x, *a, **k: torch.fft.irfft(x, *a, **k).to(torch.bfloat16))(Uf * Kf[None, :, :], L2)[:, :, :L]
        y = (lambda x, *d: x.permute(*d))(y, 0, 2, 1)
        return y + u * D_skip[None, None, :]

    def _B_ref(x, w1, b1, w2, b2):
        y = _layernorm(x, axis=-1)
        h = _gelu(torch.einsum("bsd,df->bsf", y, w1) + b1)
        return torch.einsum("bsf,fd->bsd", h, w2) + b2

    x = A_u
    xn = _layernorm(x, axis=-1)
    return x + _A_ref(xn, A_log_A_real, A_A_imag, A_C_real, A_C_imag, A_log_dt, A_D_skip) + _B_ref(xn, B_w1, B_b1, B_w2, B_b2)
```

```python
HDR = open('parallel_sum__ssm_conv_s4d__mixer_channel_mlp__prompt.s.ref').read().split('; Override launch')[0]

class Asm:
    def __init__(self):
        self.lines = []
        self.launches = []
        self.kernels = []
        self._uid = 0
    def __call__(self, s):
        for l in s.split('\n'):
            l = l.strip()
            if not l: continue
            if l.endswith(':') or l.startswith('.'):
                self.lines.append(l)
            else:
                self.lines.append('    ' + l)
    def uid(self, p='L'):
        self._uid += 1
        return f'{p}_{self._uid}'
    def launch(self, name, grid, block, lds=0):
        self.launches.append(f'; @launch kernel={name} grid=({grid[0]},{grid[1]},{grid[2]}) block=({block[0]},{block[1]},{block[2]}) lds={lds}')
    def begin(self, name):
        self(f'.globl {name}\n.p2align 8\n.type {name},@function\n{name}:')
    def kernel_desc(self, name, vgpr, sgpr=96, accum=None, wgy=False):
        if accum is None: accum = (vgpr+3)//4*4
        self.kernels.append((name, vgpr, sgpr, accum, wgy))
    def text(self):
        s = HDR + '\n'.join(self.launches) + '\n'
        s += '.amdgcn_target "amdgcn-amd-amdhsa--gfx950"\n.text\n'
        s += '\n'.join(self.lines) + '\n'
        s += '.section .rodata,"a"\n'
        for (name, vgpr, sgpr, accum, wgy) in self.kernels:
            s += f""".p2align 6
.amdhsa_kernel {name}
  .amdhsa_next_free_vgpr {vgpr}
  .amdhsa_next_free_sgpr {sgpr}
  .amdhsa_accum_offset {accum}
  .amdhsa_group_segment_fixed_size 0
  .amdhsa_kernarg_size 120
  .amdhsa_user_sgpr_count 2
  .amdhsa_user_sgpr_kernarg_segment_ptr 1
  .amdhsa_system_sgpr_workgroup_id_x 1
"""
            if wgy: s += "  .amdhsa_system_sgpr_workgroup_id_y 1\n"
            s += "  .amdhsa_float_denorm_mode_32 3\n  .amdhsa_float_denorm_mode_16_64 3\n"
            s += ".end_amdhsa_kernel\n"
        return s
    def srd(self, s, ptr_lo, size, off=0):
        if off:
            self(f's_add_u32 s{s}, s{ptr_lo}, 0x{off:x}')
            self(f's_addc_u32 s{s+1}, s{ptr_lo+1}, 0')
        else:
            self(f's_mov_b32 s{s}, s{ptr_lo}')
            self(f's_mov_b32 s{s+1}, s{ptr_lo+1}')
        self(f's_mov_b32 s{s+2}, 0x{size:x}')
        self(f's_mov_b32 s{s+3}, 0x00020000')

KA = dict(u=0, logA=8, Aim=16, Cre=24, Cim=32, logdt=40, Dskip=48, Bx=56, w1=64, b1=72, w2=80, b2=88, out=96, dbg=104, ws=112)
```

```python
import sys
sys.path.insert(0,'gen')
from asmlib import *
a = Asm()
XN=0; Y2=4<<20; KT=8<<20; YC=12<<20; H=16<<20
WS=268435456
def ldptr(s, name): a(f's_load_dwordx2 s[{s}:{s+1}], s[0:1], {KA[name]}')

a.launch('ln_kernel',(2048,1,1),(64,1,1))
a.begin('ln_kernel')
a('s_cmp_ge_u32 s2, 2048\ns_cbranch_scc1 ln_end')
ldptr(4,'u'); ldptr(6,'ws')
a('s_waitcnt lgkmcnt(0)')
a.srd(8,4,2097152); a.srd(12,6,WS)
a('''s_lshl_b32 s3, s2, 10
v_lshlrev_b32 v1, 4, v0
v_add_u32 v1, s3, v1
buffer_load_dwordx4 v[4:7], v1, s[8:11], 0 offen
s_waitcnt vmcnt(0)''')
for i in range(4):
    a(f'v_lshlrev_b32 v{8+2*i}, 16, v{4+i}')
    a(f'v_and_b32 v{9+2*i}, 0xffff0000, v{4+i}')
def wavesum(v, tmp, sreg):
    for off in [0x041F,0x081F,0x101F,0x201F,0x401F]:
        a(f'ds_swizzle_b32 v{tmp}, v{v} offset:0x{off:x}\ns_waitcnt lgkmcnt(0)\nv_add_f32 v{v}, v{v}, v{tmp}')
    a(f's_nop 1\nv_readlane_b32 s{sreg}, v{v}, 0\nv_readlane_b32 s{sreg+1}, v{v}, 32\ns_nop 3\nv_mov_b32 v{v}, s{sreg}\nv_add_f32 v{v}, s{sreg+1}, v{v}')
def ln(base):
    a(f'v_add_f32 v20, v{base}, v{base+1}')
    for i in range(2,8): a(f'v_add_f32 v20, v20, v{base+i}')
    wavesum(20,21,20)
    a('v_mul_f32 v20, 0x3b000000, v20')
    for i in range(8): a(f'v_sub_f32 v{base+i}, v{base+i}, v20')
    a(f'v_mul_f32 v22, v{base}, v{base}')
    for i in range(1,8): a(f'v_fmac_f32 v22, v{base+i}, v{base+i}')
    wavesum(22,21,20)
    a('v_mul_f32 v22, 0x3b000000, v22')
    a('v_add_f32 v22, 0x3727c5ac, v22')
    a('v_rsq_f32 v22, v22\ns_nop 1')
    for i in range(8): a(f'v_mul_f32 v{base+i}, v{base+i}, v22')
ln(8)
a('v_lshlrev_b32 v2, 5, v0\ns_lshl_b32 s3, s2, 11\nv_add_u32 v2, s3, v2')
a(f'buffer_store_dwordx4 v[8:11], v2, s[12:15], 0 offen\nbuffer_store_dwordx4 v[12:15], v2, s[12:15], 0 offen offset:16')
a('s_nop 2')
a('s_waitcnt vmcnt(0)')
ln(8)
a(f'v_add_u32 v2, 0x{Y2:x}, v2')
a(f'buffer_store_dwordx4 v[8:11], v2, s[12:15], 0 offen\nbuffer_store_dwordx4 v[12:15], v2, s[12:15], 0 offen offset:16')
a('s_waitcnt vmcnt(0)\nln_end:\ns_endpgm')
a.kernel_desc('ln_kernel',32)

a.launch('kg_kernel',(4096,1,1),(256,1,1))
a.begin('kg_kernel')
a('s_cmp_ge_u32 s2, 4096\ns_cbranch_scc1 kg_end')
ldptr(4,'logA'); ldptr(6,'Aim'); ldptr(8,'Cre'); ldptr(10,'Cim'); ldptr(12,'logdt'); ldptr(14,'ws')
a('s_waitcnt lgkmcnt(0)')
a.srd(16,4,131072); a.srd(20,6,131072); a.srd(24,8,131072); a.srd(28,10,131072); a.srd(32,12,1024); a.srd(36,14,WS)
a('''s_lshr_b32 s40, s2, 3
s_and_b32 s41, s2, 7
s_lshl_b32 s41, s41, 8
v_add_u32 v1, s41, v0
v_cvt_f32_u32 v2, v1
v_cvt_pk_bf16_f32 v2, v2, v2
v_lshlrev_b32 v2, 16, v2
s_lshl_b32 s42, s40, 1
v_mov_b32 v3, s42
buffer_load_ushort v4, v3, s[32:35], 0 offen
s_waitcnt vmcnt(0)
v_lshlrev_b32 v4, 16, v4
v_mul_f32 v4, 0x3fb8aa3b, v4
v_exp_f32 v4, v4
s_nop 1
v_cvt_pk_bf16_f32 v4, v4, v4
v_lshlrev_b32 v4, 16, v4
s_lshl_b32 s42, s40, 8
v_mov_b32 v3, s42
v_mov_b32 v5, 0
s_mov_b32 s43, 0
kg_loop:
buffer_load_ushort v8, v3, s[16:19], 0 offen
buffer_load_ushort v9, v3, s[20:23], 0 offen
buffer_load_ushort v10, v3, s[24:27], 0 offen
buffer_load_ushort v11, v3, s[28:31], 0 offen
s_waitcnt vmcnt(0)
v_lshlrev_b32 v8, 16, v8
v_lshlrev_b32 v9, 16, v9
v_lshlrev_b32 v10, 16, v10
v_lshlrev_b32 v11, 16, v11
v_mul_f32 v8, 0x3fb8aa3b, v8
v_exp_f32 v8, v8
s_nop 1
v_cvt_pk_bf16_f32 v8, v8, v8
v_lshlrev_b32 v8, 16, v8
v_mul_f32 v8, v8, v4
v_mul_f32 v8, v8, v2
v_mul_f32 v8, 0xbfb8aa3b, v8
v_exp_f32 v8, v8
v_mul_f32 v9, v9, v4
v_mul_f32 v9, v9, v2
v_mul_f32 v9, 0.15915494, v9
v_fract_f32 v9, v9
v_sin_f32 v12, v9
v_cos_f32 v13, v9
v_mul_f32 v10, v10, v4
v_mul_f32 v11, v11, v4
v_mul_f32 v13, v13, v10
v_fma_f32 v13, -v12, v11, v13
v_fmac_f32 v5, v13, v8
v_add_u32 v3, 2, v3
s_add_u32 s43, s43, 1
s_cmp_lt_u32 s43, 128
s_cbranch_scc1 kg_loop
v_add_f32 v5, v5, v5
v_lshlrev_b32 v6, 11, v1
s_lshl_b32 s42, s40, 2
''')
a(f's_add_u32 s42, s42, 0x{KT:x}\nv_add_u32 v6, s42, v6')
a('buffer_store_dword v5, v6, s[36:39], 0 offen\ns_waitcnt vmcnt(0)\nkg_end:\ns_endpgm')
a.kernel_desc('kg_kernel',32)

a.launch('cv_kernel',(4096,1,1),(256,1,1))
a.begin('cv_kernel')
a('s_cmp_ge_u32 s2, 4096\ns_cbranch_scc1 cv_end')
ldptr(14,'ws')
a('s_waitcnt lgkmcnt(0)')
a.srd(36,14,WS)
a(f'''s_lshr_b32 s40, s2, 1
s_and_b32 s41, s2, 1
s_lshl_b32 s41, s41, 8
v_add_u32 v1, s41, v0
v_lshlrev_b32 v1, 2, v1
s_lshl_b32 s42, s40, 11
v_add_u32 v2, s42, v1
v_add_u32 v3, 0x{KT:x}, v1
v_mov_b32 v5, 0
s_mov_b32 s43, 0
cv_loop:
buffer_load_dword v8, v2, s[36:39], 0 offen
buffer_load_dword v9, v3, s[36:39], 0 offen
s_waitcnt vmcnt(0)
v_fmac_f32 v5, v8, v9
v_subrev_u32 v2, 0x800, v2
v_add_u32 v3, 0x800, v3
s_add_u32 s43, s43, 1
s_cmp_le_u32 s43, s40
s_cbranch_scc1 cv_loop
v_add_u32 v2, s42, v1
v_add_u32 v2, 0x{YC:x}, v2
buffer_store_dword v5, v2, s[36:39], 0 offen
s_waitcnt vmcnt(0)
cv_end:
s_endpgm''')
a.kernel_desc('cv_kernel',32)

a.launch('g1_kernel',(12288,1,1),(256,1,1))
a.begin('g1_kernel')
a('s_cmp_ge_u32 s2, 12288\ns_cbranch_scc1 g1_end')
ldptr(4,'w1'); ldptr(6,'b1'); ldptr(14,'ws')
a('s_waitcnt lgkmcnt(0)')
a.srd(16,4,512*1376*2); a.srd(20,6,1376*2); a.srd(36,14,WS)
a(f'''s_lshr_b32 s40, s2, 11
s_and_b32 s41, s2, 2047
s_lshl_b32 s40, s40, 8
v_add_u32 v1, s40, v0
v_cmp_gt_u32 vcc, 1376, v1
s_and_saveexec_b64 s[44:45], vcc
s_cbranch_execz g1_end
v_lshlrev_b32 v2, 1, v1
s_lshl_b32 s42, s41, 11
s_add_u32 s42, s42, 0x{Y2:x}
v_mov_b32 v3, s42
buffer_load_ushort v5, v2, s[20:23], 0 offen
s_waitcnt vmcnt(0)
v_lshlrev_b32 v5, 16, v5
s_mov_b32 s43, 0
g1_loop:
buffer_load_ushort v8, v2, s[16:19], 0 offen
buffer_load_dword v9, v3, s[36:39], 0 offen
s_waitcnt vmcnt(0)
v_lshlrev_b32 v8, 16, v8
v_fmac_f32 v5, v8, v9
v_add_u32 v2, 2752, v2
v_add_u32 v3, 4, v3
s_add_u32 s43, s43, 1
s_cmp_lt_u32 s43, 512
s_cbranch_scc1 g1_loop
v_mul_f32 v6, v5, v5
v_mul_f32 v6, 0x3d372713, v6
v_add_f32 v6, 1.0, v6
v_mul_f32 v6, v6, v5
v_mul_f32 v6, 0xc0135761, v6
v_exp_f32 v6, v6
s_nop 1
v_add_f32 v6, 1.0, v6
v_rcp_f32 v6, v6
s_nop 1
v_mul_f32 v5, v5, v6
s_mul_i32 s42, s41, 5504
s_add_u32 s42, s42, 0x{H:x}
v_lshlrev_b32 v2, 2, v1
v_add_u32 v2, s42, v2
buffer_store_dword v5, v2, s[36:39], 0 offen
s_waitcnt vmcnt(0)
g1_end:
s_endpgm''')
a.kernel_desc('g1_kernel',32)

a.launch('g2_kernel',(4096,1,1),(256,1,1))
a.begin('g2_kernel')
a('s_cmp_ge_u32 s2, 4096\ns_cbranch_scc1 g2_end')
ldptr(4,'w2'); ldptr(6,'b2'); ldptr(8,'u'); ldptr(10,'Dskip'); ldptr(12,'out'); ldptr(14,'ws')
a('s_waitcnt lgkmcnt(0)')
a.srd(16,4,512*1376*2); a.srd(20,6,1024); a.srd(24,8,2097152); a.srd(28,10,1024); a.srd(32,12,2097152); a.srd(36,14,WS)
a(f'''s_lshr_b32 s41, s2, 1
s_and_b32 s40, s2, 1
s_lshl_b32 s40, s40, 8
v_add_u32 v1, s40, v0
v_lshlrev_b32 v2, 1, v1
s_mul_i32 s42, s41, 5504
s_add_u32 s42, s42, 0x{H:x}
v_mov_b32 v3, s42
buffer_load_ushort v5, v2, s[20:23], 0 offen
buffer_load_ushort v10, v2, s[28:31], 0 offen
s_lshl_b32 s42, s41, 10
v_add_u32 v11, s42, v2
buffer_load_ushort v12, v11, s[24:27], 0 offen
s_lshl_b32 s42, s41, 11
v_lshlrev_b32 v13, 2, v1
v_add_u32 v13, s42, v13
buffer_load_dword v14, v13, s[36:39], 0 offen
v_add_u32 v13, 0x{YC:x}, v13
buffer_load_dword v15, v13, s[36:39], 0 offen
s_waitcnt vmcnt(0)
v_lshlrev_b32 v5, 16, v5
v_lshlrev_b32 v10, 16, v10
v_lshlrev_b32 v12, 16, v12
v_add_f32 v5, v5, v12
v_add_f32 v5, v5, v15
v_fmac_f32 v5, v14, v10
s_mov_b32 s43, 0
g2_loop:
buffer_load_ushort v8, v2, s[16:19], 0 offen
buffer_load_dword v9, v3, s[36:39], 0 offen
s_waitcnt vmcnt(0)
v_lshlrev_b32 v8, 16, v8
v_fmac_f32 v5, v8, v9
v_add_u32 v2, 1024, v2
v_add_u32 v3, 4, v3
s_add_u32 s43, s43, 1
s_cmp_lt_u32 s43, 1376
s_cbranch_scc1 g2_loop
v_cvt_pk_bf16_f32 v5, v5, v5
buffer_store_short v5, v11, s[32:35], 0 offen
s_waitcnt vmcnt(0)
g2_end:
s_endpgm''')
a.kernel_desc('g2_kernel',32)

extra = int(sys.argv[2]) if len(sys.argv)>2 else 0
for i in range(extra):
    a.launch(f'e{i}_kernel',(256,1,1),(256,1,1))
    a.begin(f'e{i}_kernel'); a('s_endpgm'); a.kernel_desc(f'e{i}_kernel',32)
open(sys.argv[1],'w').write(a.text())
```
